```python
import torch

def _softmax(x, axis=-1):
    return torch.softmax(x, dim=axis)
def _gelu(x):
    return torch.nn.functional.gelu(x, approximate="tanh")
def _silu(x):
    return torch.nn.functional.silu(x)
def _sigmoid(x):
    return torch.sigmoid(x)
def _layernorm(x, axis=-1, eps=1e-5):
    m = x.mean(dim=axis, keepdim=True)
    v = x.var(dim=axis, keepdim=True, unbiased=False)
    return (x - m) / torch.sqrt(v + eps)
def _scatter_add(tgt, idx, src, axis=0):
    return tgt.clone().index_add_(axis, idx, src)
def _segment_sum(src, seg, n):
    out = torch.zeros((n,) + src.shape[1:], dtype=src.dtype)
    return out.index_add_(0, seg, src)
def _pad(x, pw):
    flat = tuple(v for pair in reversed(pw) for v in pair)
    return torch.nn.functional.pad(x, flat)

kernel_name = 'standalone__low_rank_proj_linformer__decode'

def setup_inputs():

    _w = (lambda a: (lambda t: t.to(torch.bfloat16) if t.is_floating_point() else t)(torch.as_tensor(a)))
    B, H, Sq, Skv, Dh, R = 1, 32, 1, 65536, 128, 16
    return {
        "q": _w((lambda *s: torch.randn(*s, dtype=torch.bfloat16) * 0.8)(B, H, Sq, Dh)),
        "k": _w((lambda *s: torch.randn(*s, dtype=torch.bfloat16) * 0.8)(B, H, Skv, Dh)),
        "v": _w((lambda *s: torch.randn(*s, dtype=torch.bfloat16) * 0.05)(B, H, Skv, Dh)),
        "e_proj": _w((lambda *s: torch.randn(*s, dtype=torch.bfloat16) * 0.8)(R, Skv) * (Skv ** -0.5)),
        "f_proj": _w((lambda *s: torch.randn(*s, dtype=torch.bfloat16) * 0.05)(R, Skv) * (Skv ** -0.5)),
    }

def reference(q, k, v, e_proj, f_proj):
    B, H, Sq, Dh = q.shape
    kp = torch.einsum("rn,bhnd->bhrd", e_proj, k)
    vp = torch.einsum("rn,bhnd->bhrd", f_proj, v)
    scores = torch.einsum("bhqd,bhrd->bhqr", q, kp) * (Dh ** -0.5)
    p = _softmax(scores, axis=-1)
    o = torch.einsum("bhqr,bhrd->bhqd", p, vp)
    return o
```

```python
import sys, argparse

NAME = "standalone__low_rank_proj_linformer__decode"

HDR = """; Kernarg layout for this problem (64 bytes, ptrs only, base s[0:1]):
"""

class G:
    def __init__(self):
        self.lines = []
    def __call__(self, s=""):
        for l in s.split("\n"):
            self.lines.append(l)
    def text(self):
        return "\n".join(self.lines) + "\n"


def gen(W=8, NT=4, kvflags="nt", eflags="", final="kernel2", stagger=0, order="inter",
        compute=True, rowmap="8g", nwg=256, interleave_issue=False, prio=0, mapping="xcd"):
    g = G()
    NTHR = W * 64
    CH = nwg // 32
    ROWS = 65536 // CH
    CHB = ROWS * 256
    TILES = ROWS // 32
    TPW = TILES // W
    assert TPW % NT == 0, (TPW, NT)
    ITERS = TPW // NT
    assert ITERS >= 2
    LDS_V = W * 8192
    LDS_S = LDS_V
    LDS_TOT = LDS_V + W * 64
    WS_SC = nwg * 8192

    vKo, vEo = 1, 2
    vQ = 4
    vB = 8
    NB = 3
    vAcc = 20
    vT = 52
    vE = vT + NT * 32
    vEnd = vE + NT * 4
    vTmp = vT
    nv = max(vEnd, vT + 72)
    assert nv <= 512
    accum_off = None
    def T(b, i, t=None):
        base = vT + b * 32 + i * 4
        if t is None: return f"v[{base}:{base+3}]"
        return f"v{base+t}"
    def E(b): return f"v[{vE+b*4}:{vE+b*4+3}]"
    def B(k, m=None):
        base = vB + (k % NB) * 4
        if m is None: return f"v[{base}:{base+3}]"
        return f"v{base+m}"
    def ACC(c, i=None):
        base = vAcc + c * 4
        if i is None: return f"v[{base}:{base+3}]"
        return f"v{base+i}"

    sW = 3
    sQ, sK, sV, sE_, sF, sO, sD, sWS = 4, 6, 8, 10, 12, 14, 16, 18
    srdK, srdV, srdE, srdF = 20, 24, 28, 32
    sXo, sPo = 36, 37
    sCnt = 38
    sH, sC = 39, 42
    sLo, sHi = 40, 41
    srdT = 44
    srdT2 = 48
    sStart = 52

    kvf = (" " + kvflags) if kvflags else ""
    ef = (" " + eflags) if eflags else ""

    g(HDR.rstrip("\n"))
    kname = f"{NAME}_kernel"
    if final == "kernel2":
        g(f"; @launch kernel={kname} grid=({nwg},1,1) block=({NTHR},1,1) lds={LDS_TOT}")
        g(f"; @launch kernel=final_kernel grid=(32,1,1) block=(512,1,1) lds=0")
    else:
        g(f"; @launch grid=({nwg},1,1) block=({NTHR},1,1) lds={LDS_TOT}")
    g('.amdgcn_target "amdgcn-amd-amdhsa--gfx950"')
    g(".text")
    g(f".globl {kname}")
    g(".p2align 8")
    g(f".type {kname},@function")
    g(f"{kname}:")
    g(f"    s_cmp_ge_u32 s2, {nwg}")
    g(f"    s_cbranch_scc1 L_end")
    g(f"    s_load_dwordx16 s[4:19], s[0:1], 0")
    g(f"    v_lshrrev_b32 v3, 6, v0")
    g(f"    v_and_b32 v0, 63, v0                 ; lane")
    g(f"    v_readfirstlane_b32 s{sW}, v3")
    if mapping == "xcd":
        g(f"    s_and_b32 s{sC}, s2, {CH-1}            ; chunk")
        g(f"    s_lshr_b32 s{sH}, s2, {CH.bit_length()-1}            ; head")
    else:
        g(f"    s_lshr_b32 s{sC}, s2, 5            ; chunk")
        g(f"    s_and_b32 s{sH}, s2, 31            ; head")
    g(f"    v_and_b32 v3, 15, v0                 ; l&15")
    g(f"    v_lshrrev_b32 v8, 4, v0              ; g")
    if rowmap == "8g":
        g(f"    v_lshlrev_b32 v{vKo}, 11, v8          ; g*2048")
    else:
        g(f"    v_lshlrev_b32 v{vKo}, 8, v8           ; g*256")
    g(f"    v_lshl_add_u32 v{vKo}, v3, 4, v{vKo}    ; + (l&15)*16")
    g(f"    v_lshlrev_b32 v{vEo}, 17, v3          ; r*131072")
    g(f"    v_lshl_add_u32 v{vEo}, v8, 4, v{vEo}    ; + g*16")
    g(f"    v_lshlrev_b32 v9, 4, v3")
    g(f"    s_mov_b32 s{sLo}, 0x05040100")
    g(f"    s_mov_b32 s{sHi}, 0x07060302")
    g(f"    s_waitcnt lgkmcnt(0)")
    g(f"    s_lshl_b32 s{srdT}, s{sH}, 24          ; head*16MiB")
    g(f"    s_mul_i32 s{srdT+1}, s{sC}, {CHB}")
    g(f"    s_add_u32 s{srdT}, s{srdT}, s{srdT+1}")
    for (srd, p) in ((srdK, sK), (srdV, sV)):
        g(f"    s_add_u32 s{srd}, s{p}, s{srdT}")
        g(f"    s_addc_u32 s{srd+1}, s{p+1}, 0")
        g(f"    s_and_b32 s{srd+1}, s{srd+1}, 0xffff")
        g(f"    s_mov_b32 s{srd+2}, {CHB}")
        g(f"    s_mov_b32 s{srd+3}, 0x20000")
    g(f"    s_mul_i32 s{srdT}, s{sC}, {ROWS*2}")
    g(f"    s_sub_u32 s{srdT+1}, {16*131072}, s{srdT}")
    for (srd, p) in ((srdE, sE_), (srdF, sF)):
        g(f"    s_add_u32 s{srd}, s{p}, s{srdT}")
        g(f"    s_addc_u32 s{srd+1}, s{p+1}, 0")
        g(f"    s_and_b32 s{srd+1}, s{srd+1}, 0xffff")
        g(f"    s_mov_b32 s{srd+2}, s{srdT+1}")
        g(f"    s_mov_b32 s{srd+3}, 0x20000")
    g(f"    s_lshl_b32 s{srdT}, s{sH}, 8")
    g(f"    s_add_u32 s{srdT2}, s{sQ}, s{srdT}")
    g(f"    s_addc_u32 s{srdT2+1}, s{sQ+1}, 0")
    g(f"    s_and_b32 s{srdT2+1}, s{srdT2+1}, 0xffff")
    g(f"    s_mov_b32 s{srdT2+2}, 256")
    g(f"    s_mov_b32 s{srdT2+3}, 0x20000")
    g(f"    buffer_load_dwordx4 v[{vQ}:{vQ+3}], v9, s[{srdT2}:{srdT2+3}], 0 offen")
    if order == "inter":
        step = W * 8192
        g(f"    s_lshl_b32 s{sStart}, s{sW}, 13         ; w*8192")
    else:
        step = 8192
        g(f"    s_mul_i32 s{sStart}, s{sW}, {TPW*8192}")
    wrap = stagger != 0
    if stagger:
        assert order == "inter"
        g(f"    s_mul_i32 s{srdT}, s2, {stagger * W * 8192}")
        g(f"    s_add_u32 s{sStart}, s{sStart}, s{srdT}")
        g(f"    s_and_b32 s{sStart}, s{sStart}, {CHB-1}")
    g(f"    s_mov_b32 s{sXo}, s{sStart}")
    g(f"    s_lshr_b32 s{sPo}, s{sXo}, 7")
    for c in range(8):
        for i in range(4):
            g(f"    v_mov_b32 {ACC(c,i)}, 0")

    rowstep = 256 if rowmap == "8g" else 1024
    def issue_tile(b, srdX, srdP, part=None):
        idx = range(8) if part is None else part
        for i in idx:
            off = i * rowstep
            if off < 4096:
                g(f"    buffer_load_dwordx4 {T(b,i)}, v{vKo}, s[{srdX}:{srdX+3}], s{sXo} offen offset:{off}{kvf}")
            else:
                g(f"    buffer_load_dwordx4 {T(b,i)}, v{vKo2}, s[{srdX}:{srdX+3}], s{sXo} offen offset:{off-4096}{kvf}")
    def issue_e(b, srdP):
        g(f"    buffer_load_dwordx4 {E(b)}, v{vEo}, s[{srdP}:{srdP+3}], s{sPo} offen{ef}")
    def advance():
        g(f"    s_add_u32 s{sXo}, s{sXo}, {step}")
        if wrap:
            g(f"    s_and_b32 s{sXo}, s{sXo}, {CHB-1}")
        g(f"    s_lshr_b32 s{sPo}, s{sXo}, 7")
    vKo2 = 3
    if rowmap != "8g":
        g(f"    v_add_u32 v{vKo2}, 4096, v{vKo}")

    for b in range(NT):
        issue_e(b, srdE)
        issue_tile(b, srdK, srdE)
        advance()

    kcnt = [0]
    def compute_tile(b, prefetch):
        if not compute:
            if prefetch:
                issue_e(b, prefetch[1]); issue_tile(b, prefetch[0], prefetch[1]); advance()
            return
        def perms(c):
            t = c >> 1
            sel = sHi if (c & 1) else sLo
            k = kcnt[0] + c
            for m in range(4):
                g(f"    v_perm_b32 {B(k,m)}, {T(b,2*m+1,t)}, {T(b,2*m,t)}, s{sel}")
        def mfma(c):
            k = kcnt[0] + c
            g(f"    v_mfma_f32_16x16x32_bf16 {ACC(c)}, {E(b)}, {B(k)}, {ACC(c)}")
        perms(0)
        perms(1)
        for c in range(8):
            mfma(c)
            if c + 2 < 8:
                perms(c + 2)
            if c == 5 and prefetch:
                issue_tile(b, prefetch[0], prefetch[1])
        kcnt[0] += 8
        if prefetch:
            issue_e(b, prefetch[1])
            advance()

    def body(prefetch, last=False):
        for b in range(NT):
            n = (NT - 1) * 9 if not last else (NT - 1 - b) * 9
            g(f"    s_waitcnt vmcnt({n})")
            kcnt[0] = 0
            compute_tile(b, prefetch)


    def phase(name, srdX, srdP, nextX, nextP):
        g(f"    s_mov_b32 s{sCnt}, {ITERS-1}")
        g(f"L_{name}_loop:")
        body((srdX, srdP))
        g(f"    s_sub_u32 s{sCnt}, s{sCnt}, 1")
        g(f"    s_cmp_lg_u32 s{sCnt}, 0")
        g(f"    s_cbranch_scc1 L_{name}_loop")
        if nextX is not None:
            g(f"    s_mov_b32 s{sXo}, s{sStart}")
            g(f"    s_lshr_b32 s{sPo}, s{sXo}, 7")
            body((nextX, nextP))
        else:
            body(None, last=True)

    phase("k", srdK, srdE, srdV, srdF)
    g(f"    s_nop 7")
    g(f"    s_nop 1")
    qf = vB
    sc = vB + 8
    for c in range(8):
        t = c >> 1
        if c & 1:
            g(f"    v_and_b32 v{qf+c}, 0xffff0000, v{vQ+t}")
        else:
            g(f"    v_lshlrev_b32 v{qf+c}, 16, v{vQ+t}")
    for i in range(4):
        g(f"    v_mul_f32 v{sc+i}, {ACC(0,i)}, v{qf}")
    for c in range(1, 8):
        for i in range(4):
            g(f"    v_fmac_f32 v{sc+i}, {ACC(c,i)}, v{qf+c}")
    for c in range(8):
        for i in range(4):
            g(f"    v_mov_b32 {ACC(c,i)}, 0")
    for sh in (8, 4, 2, 1):
        for i in range(4):
            g(f"    v_add_f32_dpp v{sc+i}, v{sc+i}, v{sc+i} row_ror:{sh} row_mask:0xf bank_mask:0xf")
    g(f"    v_lshrrev_b32 v8, 4, v0")
    g(f"    v_lshlrev_b32 v8, 4, v8")
    g(f"    s_lshl_b32 s{srdT}, s{sW}, 6")
    g(f"    s_add_u32 s{srdT}, s{srdT}, {LDS_S}")
    g(f"    v_add_u32 v8, s{srdT}, v8")
    g(f"    v_and_b32 v9, 15, v0")
    g(f"    v_cmp_eq_u32 vcc, 0, v9")
    g(f"    s_and_saveexec_b64 s[{srdT2}:{srdT2+1}], vcc")
    g(f"    ds_write_b128 v8, v[{sc}:{sc+3}]")
    g(f"    s_mov_b64 exec, s[{srdT2}:{srdT2+1}]")
    g(f"    s_nop 1")
    phase("v", srdV, srdF, None, None)

    g(f"    s_nop 7")
    g(f"    s_nop 1")
    g(f"    s_lshl_b32 s{srdT}, s{sW}, 13")
    g(f"    v_lshlrev_b32 v8, 4, v0")
    g(f"    v_add_u32 v8, s{srdT}, v8")
    for c in range(8):
        g(f"    ds_write_b128 v8, {ACC(c)} offset:{c*1024}")
    g(f"    s_waitcnt lgkmcnt(0)")
    g(f"    s_barrier")
    g(f"    s_lshl_b32 s{srdT}, s{sW}, 10       ; w*64*16")
    g(f"    v_lshlrev_b32 v8, 4, v0")
    g(f"    v_add_u32 v8, s{srdT}, v8           ; tid*16")
    g(f"    s_lshl_b32 s{srdT+1}, s2, 13")
    g(f"    s_add_u32 s{srdT2}, s{sWS}, s{srdT+1}")
    g(f"    s_addc_u32 s{srdT2+1}, s{sWS+1}, 0")
    g(f"    s_and_b32 s{srdT2+1}, s{srdT2+1}, 0xffff")
    g(f"    s_mov_b32 s{srdT2+2}, 8192")
    g(f"    s_mov_b32 s{srdT2+3}, 0x20000")
    stf = " sc1" if final == "last" else ""
    nq = max(1, 512 // NTHR)
    if NTHR > 512:
        g(f"    s_cmp_ge_u32 s{sW}, 8")
        g(f"    s_cbranch_scc1 L_red_done")
    for k in range(nq):
        R = vTmp
        for w in range(W):
            off = w * 8192 + k * NTHR * 16
            if off < 65536:
                g(f"    ds_read_b128 v[{R+w*4}:{R+w*4+3}], v8 offset:{off}")
            else:
                if off == 65536:
                    g(f"    v_add_u32 v9, 0x10000, v8")
                g(f"    ds_read_b128 v[{R+w*4}:{R+w*4+3}], v9 offset:{off-65536}")
        g(f"    s_waitcnt lgkmcnt(0)")
        for w in range(1, W):
            for i in range(4):
                g(f"    v_add_f32 v{R+i}, v{R+i}, v{R+w*4+i}")
        g(f"    buffer_store_dwordx4 v[{R}:{R+3}], v8, s[{srdT2}:{srdT2+3}], 0 offen offset:{k*NTHR*16}{stf}" if k*NTHR*16 < 4096 else None)
        if k * NTHR * 16 >= 4096:
            g(f"    v_add_u32 v9, {k*NTHR*16}, v8")
            g(f"    buffer_store_dwordx4 v[{R}:{R+3}], v9, s[{srdT2}:{srdT2+3}], 0 offen{stf}")
        g(f"    s_nop 1")
    g(f"    s_cmp_lg_u32 s{sW}, 0")
    g(f"    s_cbranch_scc1 L_red_done")
    g(f"    v_lshlrev_b32 v10, 2, v0")
    g(f"    v_add_u32 v9, {LDS_S}, v10")
    g(f"    v_cmp_gt_u32 vcc, 16, v0")
    g(f"    s_and_saveexec_b64 s[{sXo}:{sXo+1}], vcc")
    R = vTmp + 64
    R = 24
    for w in range(W):
        g(f"    ds_read_b32 v{R+w}, v9 offset:{w*64}")
    g(f"    s_waitcnt lgkmcnt(0)")
    for w in range(1, W):
        g(f"    v_add_f32 v{R}, v{R}, v{R+w}")
    g(f"    s_lshl_b32 s{srdT+1}, s2, 6")
    g(f"    s_add_u32 s{srdT+1}, s{srdT+1}, {WS_SC}")
    g(f"    s_add_u32 s{srdK}, s{sWS}, s{srdT+1}")
    g(f"    s_addc_u32 s{srdK+1}, s{sWS+1}, 0")
    g(f"    s_and_b32 s{srdK+1}, s{srdK+1}, 0xffff")
    g(f"    s_mov_b32 s{srdK+2}, 64")
    g(f"    s_mov_b32 s{srdK+3}, 0x20000")
    g(f"    buffer_store_dword v{R}, v10, s[{srdK}:{srdK+3}], 0 offen{stf}")
    g(f"    s_mov_b64 exec, s[{sXo}:{sXo+1}]")
    g(f"L_red_done:")

    def final_code(nwaves, ldflag, sHead, sWSp, sOp, srdA, srdB, srdO, pref):
        if mapping == "xcd":
            g(f"    s_mul_i32 s{srdA+2}, s{sHead}, {CH*8192}")
            pstride = 8192; sstride = 64
            g(f"    s_mul_i32 s{srdB+2}, s{sHead}, {CH*64}")
            nrecA, nrecB = CH * 8192, CH * 64
        else:
            g(f"    s_lshl_b32 s{srdA+2}, s{sHead}, 13")
            g(f"    s_lshl_b32 s{srdB+2}, s{sHead}, 6")
            pstride = 32 * 8192; sstride = 32 * 64
            nrecA, nrecB = (CH - 1) * pstride + 8192, (CH - 1) * sstride + 64
        g(f"    s_add_u32 s{srdA}, s{sWSp}, s{srdA+2}")
        g(f"    s_addc_u32 s{srdA+1}, s{sWSp+1}, 0")
        g(f"    s_and_b32 s{srdA+1}, s{srdA+1}, 0xffff")
        g(f"    s_mov_b32 s{srdA+2}, {nrecA}")
        g(f"    s_mov_b32 s{srdA+3}, 0x20000")
        g(f"    s_add_u32 s{srdB+2}, s{srdB+2}, {WS_SC}")
        g(f"    s_add_u32 s{srdB}, s{sWSp}, s{srdB+2}")
        g(f"    s_addc_u32 s{srdB+1}, s{sWSp+1}, 0")
        g(f"    s_and_b32 s{srdB+1}, s{srdB+1}, 0xffff")
        g(f"    s_mov_b32 s{srdB+2}, {nrecB}")
        g(f"    s_mov_b32 s{srdB+3}, 0x20000")
        g(f"    s_lshl_b32 s{srdO+2}, s{sHead}, 8")
        g(f"    s_add_u32 s{srdO}, s{sOp}, s{srdO+2}")
        g(f"    s_addc_u32 s{srdO+1}, s{sOp+1}, 0")
        g(f"    s_and_b32 s{srdO+1}, s{srdO+1}, 0xffff")
        g(f"    s_mov_b32 s{srdO+2}, 256")
        g(f"    s_mov_b32 s{srdO+3}, 0x20000")
        ncg = 8 // nwaves if nwaves <= 8 else 1
        g(f"    v_lshrrev_b32 v2, 4, v0")
        g(f"    v_lshlrev_b32 v2, 4, v2             ; g*16 bytes")
        S = 8
        for j in range(CH):
            off = j * sstride
            if off < 4096:
                g(f"    buffer_load_dwordx4 v[{S+j*4}:{S+j*4+3}], v2, s[{srdB}:{srdB+3}], 0 offen offset:{off}{ldflag}")
            else:
                g(f"    s_mov_b32 s{srdO+4}, {off}")
                g(f"    buffer_load_dwordx4 v[{S+j*4}:{S+j*4+3}], v2, s[{srdB}:{srdB+3}], s{srdO+4} offen{ldflag}")
        P = S + CH * 4
        g(f"    s_mul_i32 s{srdO+5}, s{sW}, {ncg*1024}")
        g(f"    v_lshlrev_b32 v1, 4, v0")
        g(f"    v_add_u32 v1, s{srdO+5}, v1          ; (w*ncg*64+lane)*16")
        for k in range(ncg):
            for j in range(CH):
                off = j * pstride + k * 1024
                g(f"    s_mov_b32 s{srdO+4}, {off}")
                r = P + (k * CH + j) * 4
                g(f"    buffer_load_dwordx4 v[{r}:{r+3}], v1, s[{srdA}:{srdA+3}], s{srdO+4} offen{ldflag}")
        g(f"    s_waitcnt vmcnt({ncg*CH})")
        for j in range(1, CH):
            for i in range(4):
                g(f"    v_add_f32 v{S+i}, v{S+i}, v{S+j*4+i}")
        import math
        cst = (128 ** -0.5) * math.log2(math.e)
        import struct
        bits = struct.unpack("<I", struct.pack("<f", cst))[0]
        g(f"    s_mov_b32 s{srdO+4}, 0x{bits:08x}")
        for i in range(4):
            g(f"    v_mul_f32 v{S+i}, s{srdO+4}, v{S+i}")
        M = S + 4
        g(f"    v_max_f32 v{M}, v{S}, v{S+1}")
        g(f"    v_max3_f32 v{M}, v{S+2}, v{S+3}, v{M}")
        def xg(reg, tmp, op):
            g(f"    v_mov_b32 v{tmp}, v{reg}")
            g(f"    s_nop 1")
            g(f"    v_permlane32_swap_b32 v{reg}, v{tmp}")
            g(f"    s_nop 1")
            g(f"    {op} v{reg}, v{reg}, v{tmp}")
            g(f"    v_mov_b32 v{tmp}, v{reg}")
            g(f"    s_nop 1")
            g(f"    v_permlane16_swap_b32 v{reg}, v{tmp}")
            g(f"    s_nop 1")
            g(f"    {op} v{reg}, v{reg}, v{tmp}")
        xg(M, M + 1, "v_max_f32")
        for i in range(4):
            g(f"    v_sub_f32 v{S+i}, v{S+i}, v{M}")
        for i in range(4):
            g(f"    v_exp_f32 v{S+i}, v{S+i}")
        g(f"    s_nop 0")
        g(f"    v_add_f32 v{M}, v{S}, v{S+1}")
        g(f"    v_add_f32 v{M+2}, v{S+2}, v{S+3}")
        g(f"    v_add_f32 v{M}, v{M}, v{M+2}")
        xg(M, M + 1, "v_add_f32")
        g(f"    v_rcp_f32 v{M}, v{M}")
        g(f"    s_nop 0")
        for i in range(4):
            g(f"    v_mul_f32 v{S+i}, v{S+i}, v{M}")
        g(f"    s_waitcnt vmcnt(0)")
        for k in range(ncg):
            r0 = P + k * CH * 4
            for j in range(1, CH):
                for i in range(4):
                    g(f"    v_add_f32 v{r0+i}, v{r0+i}, v{r0+j*4+i}")
            g(f"    v_mul_f32 v{r0}, v{r0}, v{S}")
            for i in range(1, 4):
                g(f"    v_fmac_f32 v{r0}, v{r0+i}, v{S+i}")
            xg(r0, r0 + 1, "v_add_f32")
            g(f"    v_cvt_pk_bf16_f32 v{r0}, v{r0}, v{r0}")
            g(f"    v_and_b32 v3, 15, v0")
            g(f"    v_lshlrev_b32 v3, 4, v3")
            g(f"    s_mul_i32 s{srdO+4}, s{sW}, {ncg*2}")
            g(f"    s_add_u32 s{srdO+4}, s{srdO+4}, {k*2}")
            g(f"    v_add_u32 v3, s{srdO+4}, v3")
            g(f"    v_cmp_gt_u32 vcc, 16, v0")
            g(f"    s_and_saveexec_b64 s[{srdO+6}:{srdO+7}], vcc")
            g(f"    buffer_store_short v{r0}, v3, s[{srdO}:{srdO+3}], 0 offen")
            g(f"    s_mov_b64 exec, s[{srdO+6}:{srdO+7}]")

    if final == "last":
        g(f"    s_waitcnt vmcnt(0) lgkmcnt(0)")
        g(f"    s_barrier")
        g(f"    s_cmp_lg_u32 s{sW}, 0")
        g(f"    s_cbranch_scc1 L_wait_flag")
        g(f"    v_mov_b32 v8, 1")
        g(f"    s_lshl_b32 s{srdT}, s{sH}, 2")
        g(f"    v_mov_b32 v9, s{srdT}")
        g(f"    v_cmp_eq_u32 vcc, 0, v0")
        g(f"    s_and_saveexec_b64 s[{sXo}:{sXo+1}], vcc")
        g(f"    global_atomic_add v10, v9, v8, s[{sD}:{sD+1}] sc0")
        g(f"    s_waitcnt vmcnt(0)")
        g(f"    v_mov_b32 v9, {LDS_S}")
        g(f"    ds_write_b32 v9, v10")
        g(f"    s_waitcnt lgkmcnt(0)")
        g(f"    s_mov_b64 exec, s[{sXo}:{sXo+1}]")
        g(f"L_wait_flag:")
        g(f"    s_barrier")
        g(f"    v_mov_b32 v9, {LDS_S}")
        g(f"    ds_read_b32 v10, v9")
        g(f"    s_waitcnt lgkmcnt(0)")
        g(f"    v_readfirstlane_b32 s{srdT}, v10")
        g(f"    s_nop 3")
        g(f"    s_cmp_lg_u32 s{srdT}, {CH-1}")
        g(f"    s_cbranch_scc1 L_end")
        if NTHR > 512:
            g(f"    s_cmp_ge_u32 s{sW}, 8")
            g(f"    s_cbranch_scc1 L_end")
        final_code(W, " sc1", sH, sWS, sO, srdK, srdV, srdE, "m")
    g(f"L_end:")
    g(f"    s_endpgm")

    if final == "kernel2":
        g(".globl final_kernel")
        g(".p2align 8")
        g(".type final_kernel,@function")
        g("final_kernel:")
        g(f"    s_cmp_ge_u32 s2, 32")
        g(f"    s_cbranch_scc1 L_end2")
        g(f"    s_load_dwordx16 s[4:19], s[0:1], 0")
        g(f"    v_lshrrev_b32 v3, 6, v0")
        g(f"    v_and_b32 v0, 63, v0                 ; lane")
        g(f"    v_readfirstlane_b32 s{sW}, v3")
        g(f"    s_waitcnt lgkmcnt(0)")
        final_code(8, "", 2, sWS, sO, srdK, srdV, srdE, "f")
        g("L_end2:")
        g("    s_endpgm")

    nvg = max(nv, 8 + 16 * 4 + 8 * 16 * 4 // 8 + 16)
    nvg = (nvg + 7) // 8 * 8
    g('.section .rodata,"a"')
    def kd(name, nvgpr):
        g(".p2align 6")
        g(f".amdhsa_kernel {name}")
        if nvgpr > 256:
            g(f"  .amdhsa_next_free_vgpr {nvgpr}")
            g(f"  .amdhsa_accum_offset 256")
        else:
            g(f"  .amdhsa_next_free_vgpr {nvgpr}")
            g(f"  .amdhsa_accum_offset {nvgpr}")
        g(f"  .amdhsa_next_free_sgpr 64")
        g("  .amdhsa_group_segment_fixed_size 0")
        g("  .amdhsa_kernarg_size 64")
        g("  .amdhsa_user_sgpr_count 2")
        g("  .amdhsa_user_sgpr_kernarg_segment_ptr 1")
        g("  .amdhsa_system_sgpr_workgroup_id_x 1")
        g(".end_amdhsa_kernel")
    kd(kname, nvg)
    if final == "kernel2":
        kd("final_kernel", 128)
    return g.text()


if __name__ == "__main__":
    ap = argparse.ArgumentParser()
    ap.add_argument("-o", default="/dev/stdout")
    ap.add_argument("--W", type=int, default=8)
    ap.add_argument("--NT", type=int, default=4)
    ap.add_argument("--kv", default="nt")
    ap.add_argument("--e", default="")
    ap.add_argument("--final", default="kernel2")
    ap.add_argument("--stagger", type=int, default=0)
    ap.add_argument("--order", default="inter")
    ap.add_argument("--nocompute", action="store_true")
    ap.add_argument("--rowmap", default="8g")
    ap.add_argument("--nwg", type=int, default=256)
    ap.add_argument("--mapping", default="xcd")
    a = ap.parse_args()
    txt = gen(W=a.W, NT=a.NT, kvflags=a.kv, eflags=a.e, final=a.final, stagger=a.stagger, order=a.order,
              compute=not a.nocompute, rowmap=a.rowmap, nwg=a.nwg, mapping=a.mapping)
    open(a.o, "w").write(txt)
```

```python
import sys, argparse

NAME = "standalone__low_rank_proj_linformer__decode"

HDR = """; Kernarg layout for this problem (64 bytes, ptrs only, base s[0:1]):
"""

class G:
    def __init__(self):
        self.lines = []
    def __call__(self, s=""):
        for l in s.split("\n"):
            self.lines.append(l)
    def text(self):
        return "\n".join(self.lines) + "\n"


def gen(W=8, NT=4, kvflags="nt", eflags="", final="kernel2", stagger=0, order="inter",
        compute=True, rowmap="8g", nwg=256, interleave_issue=False, prio=0, mapping="xcd", X=0, stamp=False):
    g = G()
    NTHR = W * 64
    CH = nwg // 32
    ROWS = 65536 // CH
    CHB = ROWS * 256
    TILES = ROWS // 32
    TPW = TILES // W
    assert TPW % NT == 0, (TPW, NT)
    ITERS = TPW // NT
    assert ITERS >= 2
    LDS_V = W * 8192
    LDS_S = LDS_V
    LDS_TOT = LDS_V + W * 64
    WS_SC = nwg * 8192

    vKo, vEo = 1, 2
    vQ = 4
    vB = 8
    NB = 3
    vAcc = 20
    vT = 52
    vE = vT + NT * 32
    vEnd = vE + NT * 4
    vTmp = vT
    nv = max(vEnd, vT + 4 * W, 40)
    assert nv <= 512
    accum_off = None
    def T(b, i, t=None):
        base = vT + b * 32 + i * 4
        if t is None: return f"v[{base}:{base+3}]"
        return f"v{base+t}"
    def E(b): return f"v[{vE+b*4}:{vE+b*4+3}]"
    def B(k, m=None):
        base = vB + (k % NB) * 4
        if m is None: return f"v[{base}:{base+3}]"
        return f"v{base+m}"
    def ACC(c, i=None):
        base = vAcc + c * 4
        if i is None: return f"v[{base}:{base+3}]"
        return f"v{base+i}"

    sW = 3
    sQ, sK, sV, sE_, sF, sO, sD, sWS = 4, 6, 8, 10, 12, 14, 16, 18
    srdK, srdV, srdE, srdF = 20, 24, 28, 32
    sXo, sPo = 36, 37
    sCnt = 38
    sH, sC = 39, 42
    sLo, sHi = 40, 41
    srdT = 44
    srdT2 = 48
    sStart = 52

    kvf = (" " + kvflags) if kvflags else ""
    ef = (" " + eflags) if eflags else ""

    g(HDR.rstrip("\n"))
    kname = f"{NAME}_kernel"
    if final == "kernel2":
        g(f"; @launch kernel={kname} grid=({nwg},1,1) block=({NTHR},1,1) lds={LDS_TOT}")
        g(f"; @launch kernel=final_kernel grid=(32,1,1) block=(512,1,1) lds=0")
    else:
        g(f"; @launch grid=({nwg},1,1) block=({NTHR},1,1) lds={LDS_TOT}")
    g('.amdgcn_target "amdgcn-amd-amdhsa--gfx950"')
    g(".text")
    g(f".globl {kname}")
    g(".p2align 8")
    g(f".type {kname},@function")
    g(f"{kname}:")
    g(f"    s_cmp_ge_u32 s2, {nwg}")
    g(f"    s_cbranch_scc1 L_end")
    g(f"    s_load_dwordx16 s[4:19], s[0:1], 0")
    g(f"    v_lshrrev_b32 v3, 6, v0")
    g(f"    v_and_b32 v0, 63, v0                 ; lane")
    g(f"    v_readfirstlane_b32 s{sW}, v3")
    if mapping == "xcd":
        g(f"    s_and_b32 s{sC}, s2, {CH-1}            ; chunk")
        g(f"    s_lshr_b32 s{sH}, s2, {CH.bit_length()-1}            ; head")
    else:
        g(f"    s_lshr_b32 s{sC}, s2, 5            ; chunk")
        g(f"    s_and_b32 s{sH}, s2, 31            ; head")
    g(f"    v_and_b32 v3, 15, v0                 ; l&15")
    g(f"    v_lshrrev_b32 v8, 4, v0              ; g")
    if rowmap == "8g":
        g(f"    v_lshlrev_b32 v{vKo}, 11, v8          ; g*2048")
    else:
        g(f"    v_lshlrev_b32 v{vKo}, 8, v8           ; g*256")
    g(f"    v_lshl_add_u32 v{vKo}, v3, 4, v{vKo}    ; + (l&15)*16")
    g(f"    v_lshlrev_b32 v{vEo}, 17, v3          ; r*131072")
    g(f"    v_lshl_add_u32 v{vEo}, v8, 4, v{vEo}    ; + g*16")
    g(f"    v_lshlrev_b32 v9, 4, v3")
    g(f"    s_mov_b32 s{sLo}, 0x05040100")
    g(f"    s_mov_b32 s{sHi}, 0x07060302")
    g(f"    s_waitcnt lgkmcnt(0)")
    g(f"    s_lshl_b32 s{srdT}, s{sH}, 24          ; head*16MiB")
    g(f"    s_mul_i32 s{srdT+1}, s{sC}, {CHB}")
    g(f"    s_add_u32 s{srdT}, s{srdT}, s{srdT+1}")
    for (srd, p) in ((srdK, sK), (srdV, sV)):
        g(f"    s_add_u32 s{srd}, s{p}, s{srdT}")
        g(f"    s_addc_u32 s{srd+1}, s{p+1}, 0")
        g(f"    s_and_b32 s{srd+1}, s{srd+1}, 0xffff")
        g(f"    s_mov_b32 s{srd+2}, {CHB}")
        g(f"    s_mov_b32 s{srd+3}, 0x20000")
    g(f"    s_mul_i32 s{srdT}, s{sC}, {ROWS*2}")
    g(f"    s_sub_u32 s{srdT+1}, {16*131072}, s{srdT}")
    for (srd, p) in ((srdE, sE_), (srdF, sF)):
        g(f"    s_add_u32 s{srd}, s{p}, s{srdT}")
        g(f"    s_addc_u32 s{srd+1}, s{p+1}, 0")
        g(f"    s_and_b32 s{srd+1}, s{srd+1}, 0xffff")
        g(f"    s_mov_b32 s{srd+2}, s{srdT+1}")
        g(f"    s_mov_b32 s{srd+3}, 0x20000")
    g(f"    s_lshl_b32 s{srdT}, s{sH}, 8")
    g(f"    s_add_u32 s{srdT2}, s{sQ}, s{srdT}")
    g(f"    s_addc_u32 s{srdT2+1}, s{sQ+1}, 0")
    g(f"    s_and_b32 s{srdT2+1}, s{srdT2+1}, 0xffff")
    g(f"    s_mov_b32 s{srdT2+2}, 256")
    g(f"    s_mov_b32 s{srdT2+3}, 0x20000")
    g(f"    buffer_load_dwordx4 v[{vQ}:{vQ+3}], v9, s[{srdT2}:{srdT2+3}], 0 offen")
    if order == "inter":
        step = W * 8192
        g(f"    s_lshl_b32 s{sStart}, s{sW}, 13         ; w*8192")
    else:
        step = 8192
        g(f"    s_mul_i32 s{sStart}, s{sW}, {TPW*8192}")
    wrap = stagger != 0
    if stagger:
        assert order == "inter"
        g(f"    s_mul_i32 s{srdT}, s2, {stagger * W * 8192}")
        g(f"    s_add_u32 s{sStart}, s{sStart}, s{srdT}")
        g(f"    s_and_b32 s{sStart}, s{sStart}, {CHB-1}")
    g(f"    s_mov_b32 s{sXo}, s{sStart}")
    g(f"    s_lshr_b32 s{sPo}, s{sXo}, 7")
    for c in range(8):
        for i in range(4):
            g(f"    v_mov_b32 {ACC(c,i)}, 0")

    rowstep = 256 if rowmap == "8g" else 1024
    def issue_tile(b, srdX, srdP, part=None):
        idx = range(8) if part is None else part
        for i in idx:
            off = i * rowstep
            if off < 4096:
                g(f"    buffer_load_dwordx4 {T(b,i)}, v{vKo}, s[{srdX}:{srdX+3}], s{sXo} offen offset:{off}{kvf}")
            else:
                g(f"    buffer_load_dwordx4 {T(b,i)}, v{vKo2}, s[{srdX}:{srdX+3}], s{sXo} offen offset:{off-4096}{kvf}")
    def issue_e(b, srdP):
        g(f"    buffer_load_dwordx4 {E(b)}, v{vEo}, s[{srdP}:{srdP+3}], s{sPo} offen{ef}")
    def advance():
        g(f"    s_add_u32 s{sXo}, s{sXo}, {step}")
        if wrap:
            g(f"    s_and_b32 s{sXo}, s{sXo}, {CHB-1}")
        g(f"    s_lshr_b32 s{sPo}, s{sXo}, 7")
    vKo2 = 3
    if rowmap != "8g":
        g(f"    v_add_u32 v{vKo2}, 4096, v{vKo}")

    if X == 0:
        for b in range(NT):
            issue_e(b, srdE)
            issue_tile(b, srdK, srdE)
            advance()

        kcnt = [0]
        def compute_tile(b, prefetch):
            if not compute:
                if prefetch:
                    issue_e(b, prefetch[1]); issue_tile(b, prefetch[0], prefetch[1]); advance()
                return
            def perms(c):
                t = c >> 1
                sel = sHi if (c & 1) else sLo
                k = kcnt[0] + c
                for m in range(4):
                    g(f"    v_perm_b32 {B(k,m)}, {T(b,2*m+1,t)}, {T(b,2*m,t)}, s{sel}")
            def mfma(c):
                k = kcnt[0] + c
                g(f"    v_mfma_f32_16x16x32_bf16 {ACC(c)}, {E(b)}, {B(k)}, {ACC(c)}")
            perms(0)
            perms(1)
            for c in range(8):
                mfma(c)
                if c + 2 < 8:
                    perms(c + 2)
                if c == 5 and prefetch:
                    issue_tile(b, prefetch[0], prefetch[1])
            kcnt[0] += 8
            if prefetch:
                issue_e(b, prefetch[1])
                advance()

        def body(prefetch, last=False):
            for b in range(NT):
                n = (NT - 1) * 9 if not last else (NT - 1 - b) * 9
                g(f"    s_waitcnt vmcnt({n})")
                kcnt[0] = 0
                compute_tile(b, prefetch)


        def phase(name, srdX, srdP, nextX, nextP):
            g(f"    s_mov_b32 s{sCnt}, {ITERS-1}")
            g(f"L_{name}_loop:")
            body((srdX, srdP))
            g(f"    s_sub_u32 s{sCnt}, s{sCnt}, 1")
            g(f"    s_cmp_lg_u32 s{sCnt}, 0")
            g(f"    s_cbranch_scc1 L_{name}_loop")
            if nextX is not None:
                g(f"    s_mov_b32 s{sXo}, s{sStart}")
                g(f"    s_lshr_b32 s{sPo}, s{sXo}, 7")
                body((nextX, nextP))
            else:
                body(None, last=True)


    else:
        OPT = 9
        assert X <= OPT * (NT - 1), (X, NT)
        assert X <= 63
        def issue_op(trel, i, srdX, srdP):
            b = trel % NT
            if i == 0:
                issue_e(b, srdP)
            else:
                issue_tile(b, srdX, srdP, part=[i - 1])
        kcnt = [0]
        def compute_tile(b):
            def perms(c):
                t = c >> 1
                sel = sHi if (c & 1) else sLo
                for m in range(4):
                    g(f"    v_perm_b32 {B(c,m)}, {T(b,2*m+1,t)}, {T(b,2*m,t)}, s{sel}")
            def mfma(c):
                g(f"    v_mfma_f32_16x16x32_bf16 {ACC(c)}, {E(b)}, {B(c)}, {ACC(c)}")
            perms(0)
            perms(1)
            for c in range(8):
                mfma(c)
                if c + 2 < 8:
                    perms(c + 2)
        for p in range(X):
            issue_op(p // OPT, p % OPT, srdK, srdE)
            if p % OPT == OPT - 1:
                advance()
        def body(cur, nxt, mode):
            tot = OPT * NT
            for p in range(tot):
                q = p + X
                trel, i = q // OPT, q % OPT
                if mode == "drain" and trel >= NT:
                    g(f"    s_waitcnt vmcnt({tot - 1 - p})")
                else:
                    g(f"    s_waitcnt vmcnt({X - 1})")
                    srcs = nxt if (mode == "switch" and trel >= NT) else cur
                    issue_op(trel, i, srcs[0], srcs[1])
                    if i == OPT - 1:
                        if mode == "switch" and trel == NT - 1:
                            g(f"    s_mov_b32 s{sXo}, s{sStart}")
                            g(f"    s_lshr_b32 s{sPo}, s{sXo}, 7")
                        else:
                            advance()
                if p % OPT == OPT - 1:
                    compute_tile(p // OPT)
        def phase(name, srdX, srdP, nextX, nextP):
            g(f"    s_mov_b32 s{sCnt}, {ITERS-1}")
            g(f"L_{name}_loop:")
            body((srdX, srdP), None, "loop")
            g(f"    s_sub_u32 s{sCnt}, s{sCnt}, 1")
            g(f"    s_cmp_lg_u32 s{sCnt}, 0")
            g(f"    s_cbranch_scc1 L_{name}_loop")
            if nextX is not None:
                body((srdX, srdP), (nextX, nextP), "switch")
            else:
                body((srdX, srdP), None, "drain")

    phase("k", srdK, srdE, srdV, srdF)
    g(f"    s_nop 7")
    g(f"    s_nop 1")
    qf = vB
    sc = vB + 8
    for c in range(8):
        t = c >> 1
        if c & 1:
            g(f"    v_and_b32 v{qf+c}, 0xffff0000, v{vQ+t}")
        else:
            g(f"    v_lshlrev_b32 v{qf+c}, 16, v{vQ+t}")
    for i in range(4):
        g(f"    v_mul_f32 v{sc+i}, {ACC(0,i)}, v{qf}")
    for c in range(1, 8):
        for i in range(4):
            g(f"    v_fmac_f32 v{sc+i}, {ACC(c,i)}, v{qf+c}")
    for c in range(8):
        for i in range(4):
            g(f"    v_mov_b32 {ACC(c,i)}, 0")
    for sh in (8, 4, 2, 1):
        for i in range(4):
            g(f"    v_add_f32_dpp v{sc+i}, v{sc+i}, v{sc+i} row_ror:{sh} row_mask:0xf bank_mask:0xf")
    g(f"    v_lshrrev_b32 v8, 4, v0")
    g(f"    v_lshlrev_b32 v8, 4, v8")
    g(f"    s_lshl_b32 s{srdT}, s{sW}, 6")
    g(f"    s_add_u32 s{srdT}, s{srdT}, {LDS_S}")
    g(f"    v_add_u32 v8, s{srdT}, v8")
    g(f"    v_and_b32 v9, 15, v0")
    g(f"    v_cmp_eq_u32 vcc, 0, v9")
    g(f"    s_and_saveexec_b64 s[{srdT2}:{srdT2+1}], vcc")
    g(f"    ds_write_b128 v8, v[{sc}:{sc+3}]")
    g(f"    s_mov_b64 exec, s[{srdT2}:{srdT2+1}]")
    g(f"    s_nop 1")
    phase("v", srdV, srdF, None, None)

    g(f"    s_nop 7")
    g(f"    s_nop 1")
    g(f"    s_lshl_b32 s{srdT}, s{sW}, 13")
    g(f"    v_lshlrev_b32 v8, 4, v0")
    g(f"    v_add_u32 v8, s{srdT}, v8")
    for c in range(8):
        g(f"    ds_write_b128 v8, {ACC(c)} offset:{c*1024}")
    g(f"    s_waitcnt lgkmcnt(0)")
    g(f"    s_barrier")
    g(f"    s_lshl_b32 s{srdT}, s{sW}, 10       ; w*64*16")
    g(f"    v_lshlrev_b32 v8, 4, v0")
    g(f"    v_add_u32 v8, s{srdT}, v8           ; tid*16")
    g(f"    s_lshl_b32 s{srdT+1}, s2, 13")
    g(f"    s_add_u32 s{srdT2}, s{sWS}, s{srdT+1}")
    g(f"    s_addc_u32 s{srdT2+1}, s{sWS+1}, 0")
    g(f"    s_and_b32 s{srdT2+1}, s{srdT2+1}, 0xffff")
    g(f"    s_mov_b32 s{srdT2+2}, 8192")
    g(f"    s_mov_b32 s{srdT2+3}, 0x20000")
    stf = " sc1" if final == "last" else ""
    nq = max(1, 512 // NTHR)
    if NTHR > 512:
        g(f"    s_cmp_ge_u32 s{sW}, 8")
        g(f"    s_cbranch_scc1 L_red_done")
    for k in range(nq):
        R = vTmp
        for w in range(W):
            off = w * 8192 + k * NTHR * 16
            if off < 65536:
                g(f"    ds_read_b128 v[{R+w*4}:{R+w*4+3}], v8 offset:{off}")
            else:
                if off == 65536:
                    g(f"    v_add_u32 v9, 0x10000, v8")
                g(f"    ds_read_b128 v[{R+w*4}:{R+w*4+3}], v9 offset:{off-65536}")
        g(f"    s_waitcnt lgkmcnt(0)")
        for w in range(1, W):
            for i in range(4):
                g(f"    v_add_f32 v{R+i}, v{R+i}, v{R+w*4+i}")
        if k * NTHR * 16 < 4096:
            g(f"    buffer_store_dwordx4 v[{R}:{R+3}], v8, s[{srdT2}:{srdT2+3}], 0 offen offset:{k*NTHR*16}{stf}")
        else:
            g(f"    v_add_u32 v9, {k*NTHR*16}, v8")
            g(f"    buffer_store_dwordx4 v[{R}:{R+3}], v9, s[{srdT2}:{srdT2+3}], 0 offen{stf}")
        g(f"    s_nop 1")
    g(f"    s_cmp_lg_u32 s{sW}, 0")
    g(f"    s_cbranch_scc1 L_red_done")
    g(f"    v_lshlrev_b32 v10, 2, v0")
    g(f"    v_add_u32 v9, {LDS_S}, v10")
    g(f"    v_cmp_gt_u32 vcc, 16, v0")
    g(f"    s_and_saveexec_b64 s[{sXo}:{sXo+1}], vcc")
    R = vTmp + 64
    R = 24
    for w in range(W):
        g(f"    ds_read_b32 v{R+w}, v9 offset:{w*64}")
    g(f"    s_waitcnt lgkmcnt(0)")
    for w in range(1, W):
        g(f"    v_add_f32 v{R}, v{R}, v{R+w}")
    g(f"    s_lshl_b32 s{srdT+1}, s2, 6")
    g(f"    s_add_u32 s{srdT+1}, s{srdT+1}, {WS_SC}")
    g(f"    s_add_u32 s{srdK}, s{sWS}, s{srdT+1}")
    g(f"    s_addc_u32 s{srdK+1}, s{sWS+1}, 0")
    g(f"    s_and_b32 s{srdK+1}, s{srdK+1}, 0xffff")
    g(f"    s_mov_b32 s{srdK+2}, 64")
    g(f"    s_mov_b32 s{srdK+3}, 0x20000")
    g(f"    buffer_store_dword v{R}, v10, s[{srdK}:{srdK+3}], 0 offen{stf}")
    g(f"    s_mov_b64 exec, s[{sXo}:{sXo+1}]")
    g(f"L_red_done:")

    def final_code(nwaves, ldflag, sHead, sWSp, sOp, srdA, srdB, srdO, pref):
        if mapping == "xcd":
            g(f"    s_mul_i32 s{srdA+2}, s{sHead}, {CH*8192}")
            pstride = 8192; sstride = 64
            g(f"    s_mul_i32 s{srdB+2}, s{sHead}, {CH*64}")
            nrecA, nrecB = CH * 8192, CH * 64
        else:
            g(f"    s_lshl_b32 s{srdA+2}, s{sHead}, 13")
            g(f"    s_lshl_b32 s{srdB+2}, s{sHead}, 6")
            pstride = 32 * 8192; sstride = 32 * 64
            nrecA, nrecB = (CH - 1) * pstride + 8192, (CH - 1) * sstride + 64
        g(f"    s_add_u32 s{srdA}, s{sWSp}, s{srdA+2}")
        g(f"    s_addc_u32 s{srdA+1}, s{sWSp+1}, 0")
        g(f"    s_and_b32 s{srdA+1}, s{srdA+1}, 0xffff")
        g(f"    s_mov_b32 s{srdA+2}, {nrecA}")
        g(f"    s_mov_b32 s{srdA+3}, 0x20000")
        g(f"    s_add_u32 s{srdB+2}, s{srdB+2}, {WS_SC}")
        g(f"    s_add_u32 s{srdB}, s{sWSp}, s{srdB+2}")
        g(f"    s_addc_u32 s{srdB+1}, s{sWSp+1}, 0")
        g(f"    s_and_b32 s{srdB+1}, s{srdB+1}, 0xffff")
        g(f"    s_mov_b32 s{srdB+2}, {nrecB}")
        g(f"    s_mov_b32 s{srdB+3}, 0x20000")
        g(f"    s_lshl_b32 s{srdO+2}, s{sHead}, 8")
        g(f"    s_add_u32 s{srdO}, s{sOp}, s{srdO+2}")
        g(f"    s_addc_u32 s{srdO+1}, s{sOp+1}, 0")
        g(f"    s_and_b32 s{srdO+1}, s{srdO+1}, 0xffff")
        g(f"    s_mov_b32 s{srdO+2}, 256")
        g(f"    s_mov_b32 s{srdO+3}, 0x20000")
        ncg = 8 // nwaves if nwaves <= 8 else 1
        g(f"    v_lshrrev_b32 v2, 4, v0")
        g(f"    v_lshlrev_b32 v2, 4, v2             ; g*16 bytes")
        S = 8
        for j in range(CH):
            off = j * sstride
            if off < 4096:
                g(f"    buffer_load_dwordx4 v[{S+j*4}:{S+j*4+3}], v2, s[{srdB}:{srdB+3}], 0 offen offset:{off}{ldflag}")
            else:
                g(f"    s_mov_b32 s{srdO+4}, {off}")
                g(f"    buffer_load_dwordx4 v[{S+j*4}:{S+j*4+3}], v2, s[{srdB}:{srdB+3}], s{srdO+4} offen{ldflag}")
        P = S + CH * 4
        g(f"    s_mul_i32 s{srdO+5}, s{sW}, {ncg*1024}")
        g(f"    v_lshlrev_b32 v1, 4, v0")
        g(f"    v_add_u32 v1, s{srdO+5}, v1          ; (w*ncg*64+lane)*16")
        for k in range(ncg):
            for j in range(CH):
                off = j * pstride + k * 1024
                g(f"    s_mov_b32 s{srdO+4}, {off}")
                r = P + (k * CH + j) * 4
                g(f"    buffer_load_dwordx4 v[{r}:{r+3}], v1, s[{srdA}:{srdA+3}], s{srdO+4} offen{ldflag}")
        g(f"    s_waitcnt vmcnt({ncg*CH})")
        for j in range(1, CH):
            for i in range(4):
                g(f"    v_add_f32 v{S+i}, v{S+i}, v{S+j*4+i}")
        import math
        cst = (128 ** -0.5) * math.log2(math.e)
        import struct
        bits = struct.unpack("<I", struct.pack("<f", cst))[0]
        g(f"    s_mov_b32 s{srdO+4}, 0x{bits:08x}")
        for i in range(4):
            g(f"    v_mul_f32 v{S+i}, s{srdO+4}, v{S+i}")
        M = S + 4
        g(f"    v_max_f32 v{M}, v{S}, v{S+1}")
        g(f"    v_max3_f32 v{M}, v{S+2}, v{S+3}, v{M}")
        def xg(reg, tmp, op):
            g(f"    v_mov_b32 v{tmp}, v{reg}")
            g(f"    s_nop 1")
            g(f"    v_permlane32_swap_b32 v{reg}, v{tmp}")
            g(f"    s_nop 1")
            g(f"    {op} v{reg}, v{reg}, v{tmp}")
            g(f"    v_mov_b32 v{tmp}, v{reg}")
            g(f"    s_nop 1")
            g(f"    v_permlane16_swap_b32 v{reg}, v{tmp}")
            g(f"    s_nop 1")
            g(f"    {op} v{reg}, v{reg}, v{tmp}")
        xg(M, M + 1, "v_max_f32")
        for i in range(4):
            g(f"    v_sub_f32 v{S+i}, v{S+i}, v{M}")
        for i in range(4):
            g(f"    v_exp_f32 v{S+i}, v{S+i}")
        g(f"    s_nop 0")
        g(f"    v_add_f32 v{M}, v{S}, v{S+1}")
        g(f"    v_add_f32 v{M+2}, v{S+2}, v{S+3}")
        g(f"    v_add_f32 v{M}, v{M}, v{M+2}")
        xg(M, M + 1, "v_add_f32")
        g(f"    v_rcp_f32 v{M}, v{M}")
        g(f"    s_nop 0")
        for i in range(4):
            g(f"    v_mul_f32 v{S+i}, v{S+i}, v{M}")
        g(f"    s_waitcnt vmcnt(0)")
        for k in range(ncg):
            r0 = P + k * CH * 4
            for j in range(1, CH):
                for i in range(4):
                    g(f"    v_add_f32 v{r0+i}, v{r0+i}, v{r0+j*4+i}")
            g(f"    v_mul_f32 v{r0}, v{r0}, v{S}")
            for i in range(1, 4):
                g(f"    v_fmac_f32 v{r0}, v{r0+i}, v{S+i}")
            xg(r0, r0 + 1, "v_add_f32")
            g(f"    v_cvt_pk_bf16_f32 v{r0}, v{r0}, v{r0}")
            g(f"    v_and_b32 v3, 15, v0")
            g(f"    v_lshlrev_b32 v3, 4, v3")
            g(f"    s_mul_i32 s{srdO+4}, s{sW}, {ncg*2}")
            g(f"    s_add_u32 s{srdO+4}, s{srdO+4}, {k*2}")
            g(f"    v_add_u32 v3, s{srdO+4}, v3")
            g(f"    v_cmp_gt_u32 vcc, 16, v0")
            g(f"    s_and_saveexec_b64 s[{srdO+6}:{srdO+7}], vcc")
            g(f"    buffer_store_short v{r0}, v3, s[{srdO}:{srdO+3}], 0 offen")
            g(f"    s_mov_b64 exec, s[{srdO+6}:{srdO+7}]")

    if final == "last":
        g(f"    s_waitcnt vmcnt(0) lgkmcnt(0)")
        g(f"    s_barrier")
        g(f"    s_cmp_lg_u32 s{sW}, 0")
        g(f"    s_cbranch_scc1 L_wait_flag")
        g(f"    v_mov_b32 v8, 1")
        g(f"    s_lshl_b32 s{srdT}, s{sH}, 2")
        g(f"    v_mov_b32 v9, s{srdT}")
        g(f"    v_cmp_eq_u32 vcc, 0, v0")
        g(f"    s_and_saveexec_b64 s[{sXo}:{sXo+1}], vcc")
        g(f"    global_atomic_add v10, v9, v8, s[{sD}:{sD+1}] sc0")
        g(f"    s_waitcnt vmcnt(0)")
        g(f"    v_mov_b32 v9, {LDS_S}")
        g(f"    ds_write_b32 v9, v10")
        g(f"    s_waitcnt lgkmcnt(0)")
        g(f"    s_mov_b64 exec, s[{sXo}:{sXo+1}]")
        g(f"L_wait_flag:")
        g(f"    s_barrier")
        g(f"    v_mov_b32 v9, {LDS_S}")
        g(f"    ds_read_b32 v10, v9")
        g(f"    s_waitcnt lgkmcnt(0)")
        g(f"    v_readfirstlane_b32 s{srdT}, v10")
        g(f"    s_nop 3")
        g(f"    s_cmp_lg_u32 s{srdT}, {CH-1}")
        g(f"    s_cbranch_scc1 L_end")
        if NTHR > 512:
            g(f"    s_cmp_ge_u32 s{sW}, 8")
            g(f"    s_cbranch_scc1 L_end")
        final_code(W, " sc1", sH, sWS, sO, srdK, srdV, srdE, "m")
    g(f"L_end:")
    g(f"    s_endpgm")

    if final == "kernel2":
        g(".globl final_kernel")
        g(".p2align 8")
        g(".type final_kernel,@function")
        g("final_kernel:")
        g(f"    s_cmp_ge_u32 s2, 32")
        g(f"    s_cbranch_scc1 L_end2")
        g(f"    s_load_dwordx16 s[4:19], s[0:1], 0")
        g(f"    v_lshrrev_b32 v3, 6, v0")
        g(f"    v_and_b32 v0, 63, v0                 ; lane")
        g(f"    v_readfirstlane_b32 s{sW}, v3")
        g(f"    s_waitcnt lgkmcnt(0)")
        final_code(8, "", 2, sWS, sO, srdK, srdV, srdE, "f")
        g("L_end2:")
        g("    s_endpgm")

    nvg = nv
    if final == "last":
        nvg = max(nv, 8 + CH * 4 + max(1, 8 // W) * CH * 4 + 8)
    nvg = (nvg + 7) // 8 * 8
    g('.section .rodata,"a"')
    def kd(name, nvgpr):
        g(".p2align 6")
        g(f".amdhsa_kernel {name}")
        if nvgpr > 256:
            g(f"  .amdhsa_next_free_vgpr {nvgpr}")
            g(f"  .amdhsa_accum_offset 256")
        else:
            g(f"  .amdhsa_next_free_vgpr {nvgpr}")
            g(f"  .amdhsa_accum_offset {nvgpr}")
        g(f"  .amdhsa_next_free_sgpr 64")
        g("  .amdhsa_group_segment_fixed_size 0")
        g("  .amdhsa_kernarg_size 64")
        g("  .amdhsa_user_sgpr_count 2")
        g("  .amdhsa_user_sgpr_kernarg_segment_ptr 1")
        g("  .amdhsa_system_sgpr_workgroup_id_x 1")
        g(".end_amdhsa_kernel")
    kd(kname, nvg)
    if final == "kernel2":
        kd("final_kernel", 128)
    return g.text()


if __name__ == "__main__":
    ap = argparse.ArgumentParser()
    ap.add_argument("-o", default="/dev/stdout")
    ap.add_argument("--W", type=int, default=8)
    ap.add_argument("--NT", type=int, default=4)
    ap.add_argument("--kv", default="nt")
    ap.add_argument("--e", default="")
    ap.add_argument("--final", default="kernel2")
    ap.add_argument("--stagger", type=int, default=0)
    ap.add_argument("--order", default="inter")
    ap.add_argument("--nocompute", action="store_true")
    ap.add_argument("--rowmap", default="8g")
    ap.add_argument("--nwg", type=int, default=256)
    ap.add_argument("--mapping", default="xcd")
    ap.add_argument("--X", type=int, default=0)
    a = ap.parse_args()
    txt = gen(W=a.W, NT=a.NT, kvflags=a.kv, eflags=a.e, final=a.final, stagger=a.stagger, order=a.order,
              compute=not a.nocompute, rowmap=a.rowmap, nwg=a.nwg, mapping=a.mapping, X=a.X)
    open(a.o, "w").write(txt)
```
